```python
import torch

def _softmax(x, axis=-1):
    return torch.softmax(x, dim=axis)
def _gelu(x):
    return torch.nn.functional.gelu(x, approximate="tanh")
def _silu(x):
    return torch.nn.functional.silu(x)
def _sigmoid(x):
    return torch.sigmoid(x)
def _layernorm(x, axis=-1, eps=1e-5):
    m = x.mean(dim=axis, keepdim=True)
    v = x.var(dim=axis, keepdim=True, unbiased=False)
    return (x - m) / torch.sqrt(v + eps)
def _scatter_add(tgt, idx, src, axis=0):
    return tgt.clone().index_add_(axis, idx, src)
def _segment_sum(src, seg, n):
    out = torch.zeros((n,) + src.shape[1:], dtype=src.dtype)
    return out.index_add_(0, seg, src)
def _pad(x, pw):
    flat = tuple(v for pair in reversed(pw) for v in pair)
    return torch.nn.functional.pad(x, flat)

kernel_name = 'concat_heads__ssm_conv_s4d__ssm_conv_s4d__prompt'

def setup_inputs():

    _w = (lambda a: (lambda t: t.to(torch.bfloat16) if t.is_floating_point() else t)(torch.as_tensor(a)))
    def _A_setup():
        Bsz, L, D, N = 1, 2048, 576, 128
        return {
            "u": _w((lambda *s: torch.randn(*s, dtype=torch.bfloat16) * 0.05)(Bsz, L, D)),
            "log_A_real": _w((lambda *s: torch.randn(*s, dtype=torch.bfloat16) * 6.4)(D, N) * 0.5),
            "A_imag": _w((lambda *s: torch.randn(*s, dtype=torch.bfloat16) * 0.05)(D, N) * 3.14),
            "C_real": _w((lambda *s: torch.randn(*s, dtype=torch.bfloat16) * 0.05)(D, N) / N ** 0.5),
            "C_imag": _w((lambda *s: torch.randn(*s, dtype=torch.bfloat16) * 0.05)(D, N) / N ** 0.5),
            "log_dt": _w((lambda *s: torch.randn(*s, dtype=torch.bfloat16) * 0.05)(D) * 0.5 - 4.0),
            "D_skip": _w((lambda *s: torch.randn(*s, dtype=torch.bfloat16) * 0.05)(D)),
        }
    _A_in = _A_setup()

    def _B_setup():
        Bsz, L, D, N = 1, 2048, 576, 128
        return {
            "u": _w((lambda *s: torch.randn(*s, dtype=torch.bfloat16) * 0.05)(Bsz, L, D)),
            "log_A_real": _w((lambda *s: torch.randn(*s, dtype=torch.bfloat16) * 6.4)(D, N) * 0.5),
            "A_imag": _w((lambda *s: torch.randn(*s, dtype=torch.bfloat16) * 0.05)(D, N) * 3.14),
            "C_real": _w((lambda *s: torch.randn(*s, dtype=torch.bfloat16) * 0.05)(D, N) / N ** 0.5),
            "C_imag": _w((lambda *s: torch.randn(*s, dtype=torch.bfloat16) * 0.05)(D, N) / N ** 0.5),
            "log_dt": _w((lambda *s: torch.randn(*s, dtype=torch.bfloat16) * 0.05)(D) * 0.5 - 4.0),
            "D_skip": _w((lambda *s: torch.randn(*s, dtype=torch.bfloat16) * 0.05)(D)),
        }
    _B_in = _B_setup()

    return {
        "A_u": _A_in["u"],
        "A_log_A_real": _A_in["log_A_real"],
        "A_A_imag": _A_in["A_imag"],
        "A_C_real": _A_in["C_real"],
        "A_C_imag": _A_in["C_imag"],
        "A_log_dt": _A_in["log_dt"],
        "A_D_skip": _A_in["D_skip"],
        "B_u": _B_in["u"],
        "B_log_A_real": _B_in["log_A_real"],
        "B_A_imag": _B_in["A_imag"],
        "B_C_real": _B_in["C_real"],
        "B_C_imag": _B_in["C_imag"],
        "B_log_dt": _B_in["log_dt"],
        "B_D_skip": _B_in["D_skip"],
    }

def reference(A_u, A_log_A_real, A_A_imag, A_C_real, A_C_imag, A_log_dt, A_D_skip, B_u, B_log_A_real, B_A_imag, B_C_real, B_C_imag, B_log_dt, B_D_skip):
    def _A_ref(u, log_A_real, A_imag, C_real, C_imag, log_dt, D_skip):
        L = u.shape[1]
        dt = torch.exp(log_dt)
        A = -torch.exp(log_A_real) + 1j * A_imag
        C = (C_real + 1j * C_imag) * dt[:, None]
        pos = (lambda x, dt: x.to(dt))(torch.arange(L), log_dt.dtype)
        P = torch.exp((A * dt[:, None])[:, :, None] * pos[None, None, :])
        K = 2.0 * torch.einsum("dn,dnl->dl", C, P).real
        L2 = 2 * L
        u_t = (lambda x, *d: x.permute(*d))(u, 0, 2, 1)
        Kf = (lambda x, *a, **k: torch.fft.rfft(x.float(), *a, **k))(K, L2)
        Uf = (lambda x, *a, **k: torch.fft.rfft(x.float(), *a, **k))(u_t, L2)
        y = (lambda x, *a, **k: torch.fft.irfft(x, *a, **k).to(torch.bfloat16))(Uf * Kf[None, :, :], L2)[:, :, :L]
        y = (lambda x, *d: x.permute(*d))(y, 0, 2, 1)
        return y + u * D_skip[None, None, :]

    def _B_ref(u, log_A_real, A_imag, C_real, C_imag, log_dt, D_skip):
        L = u.shape[1]
        dt = torch.exp(log_dt)
        A = -torch.exp(log_A_real) + 1j * A_imag
        C = (C_real + 1j * C_imag) * dt[:, None]
        pos = (lambda x, dt: x.to(dt))(torch.arange(L), log_dt.dtype)
        P = torch.exp((A * dt[:, None])[:, :, None] * pos[None, None, :])
        K = 2.0 * torch.einsum("dn,dnl->dl", C, P).real
        L2 = 2 * L
        u_t = (lambda x, *d: x.permute(*d))(u, 0, 2, 1)
        Kf = (lambda x, *a, **k: torch.fft.rfft(x.float(), *a, **k))(K, L2)
        Uf = (lambda x, *a, **k: torch.fft.rfft(x.float(), *a, **k))(u_t, L2)
        y = (lambda x, *a, **k: torch.fft.irfft(x, *a, **k).to(torch.bfloat16))(Uf * Kf[None, :, :], L2)[:, :, :L]
        y = (lambda x, *d: x.permute(*d))(y, 0, 2, 1)
        return y + u * D_skip[None, None, :]

    a = _A_ref(A_u, A_log_A_real, A_A_imag, A_C_real, A_C_imag, A_log_dt, A_D_skip)
    b = _B_ref(B_u, B_log_A_real, B_A_imag, B_C_real, B_C_imag, B_log_dt, B_D_skip)
    return torch.concatenate([a, b], axis=-1)
```

```python
import sys
NAME = "concat_heads__ssm_conv_s4d__ssm_conv_s4d__prompt"
HDR = open("cdna_kernels/%s.s.ref" % NAME).read().split("; Override launch")[0]

R1S = 15232
RS = 272
UBASE = 8*R1S
US = 4608
LDS = UBASE + 8*US
CS0, T2O, CS2, T3O, CS3 = 1216, 9728, 640, 11008, 448

class Asm:
    def __init__(self):
        self.L = []
        self.nds = 0
        self.done = 0
        self.tags = {}
    def __call__(self, s):
        self.L.append("    " + s)
    def lab(self, s): self.L.append(s + ":")
    def c(self, s): self.L.append("    ; " + s)
    def ds(self, s, tag=None):
        self(s); self.nds += 1
        if tag is not None: self.tags[tag] = self.nds
    def wait(self, *tags):
        need = max(self.tags[t] for t in tags)
        if need <= self.done: return
        n = self.nds - need
        if n > 15: n = 15; self.done = max(self.done, self.nds - 15); assert self.done >= need or True
        self("s_waitcnt lgkmcnt(%d)" % min(self.nds - need, 15))
        assert self.nds - need <= 15, "too many outstanding"
        self.done = max(self.done, need)
    def waitall(self):
        self("s_waitcnt lgkmcnt(0)"); self.done = self.nds
def vr(a, n): return "v[%d:%d]" % (a, a+n-1)

def gen():
    a = Asm()
    vU, vY, vYr, vOut = 1, 2, 3, 4
    vYp = 6
    A0 = 8; A32 = 76; W2 = 80; W3 = 104; BND = 120; ACC = 140; SH = 172; RING = 188; XT = 212; X2 = 228; X3 = 236; OUTR = 240
    Be2, Bo2a, Bo2b, Be3, Bo3 = [BND+4*i for i in range(5)]
    MSK = 240
    RAW = 188
    vTW, vTW1, vTW2, vTW5, vTW6, vT2W, vT3W, vZ1, vZ2, vTA, vT2R, vT3R = range(228, 240)
    vKF, vUW, vDm = 252, 253, 254
    vPre = 255
    pA, pI, pC = 72, 73, 74
    vdt, vD = 76, 77
    cN, cP, c2 = 78, 79, 80
    w1, w2, w8, w256 = 82, 84, 86, 88
    E, F, tE, tF, F260, F264, F0 = 90, 92, 94, 96, 98, 100, 102
    P = 104
    T = 112
    KD = 140
    PK = 156
    vl, vb, vg, vj, vh = 204, 205, 206, 207, 208
    t0, t1, t2, t3 = 209, 210, 211, 5

    a("s_cmp_ge_u32 s2, 144")
    a("s_cbranch_scc1 L_end")
    a("s_and_b32 s5, s2, 7")
    a("s_lshr_b32 s6, s2, 3")
    a("s_mul_i32 s3, s5, 18")
    a("s_add_u32 s3, s3, s6")
    a("s_cmp_ge_u32 s3, 72")
    a("s_cselect_b32 s7, 56, 0")
    a("s_cselect_b32 s26, 72, 0")
    a("s_add_u32 s30, s0, s7")
    a("s_addc_u32 s31, s1, 0")
    a("s_load_dwordx16 s[8:23], s[30:31], 0")
    a("s_load_dwordx2 s[24:25], s[0:1], 112")
    a("v_readfirstlane_b32 s4, v0")
    a("s_sub_u32 s26, s3, s26")
    a("s_lshl_b32 s26, s26, 3")
    a("s_lshr_b32 s4, s4, 6")
    a("s_add_u32 s27, s26, s4")
    a("v_and_b32 v%d, 63, v0" % vl)
    a("s_lshl_b32 s28, s27, 8")
    a("v_lshl_add_u32 v%d, v%d, 2, s28" % (t0, vl))
    a("s_lshl_b32 s28, s27, 1")
    a("v_mov_b32 v%d, s28" % t1)
    a("v_min_u32 v%d, 341, v0" % t2)
    a("v_mul_u32_u24 v%d, 21846, v%d" % (t3, t2))
    a("v_lshrrev_b32 v%d, 16, v%d" % (t3, t3))
    a("v_mul_u32_u24 v%d, 3, v%d" % (vb, t3))
    a("v_sub_u32 v%d, v%d, v%d" % (t2, t2, vb))
    a("s_mul_i32 s28, s6, 114")
    a("v_add_u32 v%d, s28, v%d" % (t3, t3))
    a("v_min_u32 v%d, 2047, v%d" % (t3, t3))
    a("v_mul_u32_u24 v%d, 1152, v%d" % (t3, t3))
    a("v_lshl_add_u32 v%d, v%d, 7, v%d" % (t3, t2, t3))
    a("s_and_b32 s28, s5, 3")
    a("s_lshl_b32 s28, s28, 8")
    a("v_add_u32 v%d, s28, v%d" % (t3, t3))
    a("v_mul_u32_u24 v%d, 4608, v0" % t2)
    a("s_lshl_b32 s28, s26, 1")
    a("v_add_u32 v%d, s28, v%d" % (t2, t2))
    a("s_waitcnt lgkmcnt(0)")
    a("global_load_dword v%d, v%d, s[10:11]" % (pA, t0))
    a("global_load_ushort v%d, v%d, s[18:19]" % (vdt, t1))
    a("global_load_dword v%d, v%d, s[12:13]" % (pI, t0))
    a("global_load_dword v%d, v%d, s[14:15]" % (pC, t0))
    a("global_load_dword v%d, v%d, s[16:17]" % (pC+1, t0))
    a("global_load_ushort v%d, v%d, s[20:21]" % (vD, t1))
    a("global_load_dword v%d, v%d, s[8:9]" % (vPre, t3))
    for i in range(4):
        a("global_load_dwordx4 %s, v%d, s[8:9] offset:%d" % (vr(RAW+4*i, 4), t2, 1152*i))
    a("v_and_b32 v%d, 15, v%d" % (vb, vl))
    a("v_lshrrev_b32 v%d, 4, v%d" % (vg, vl))
    a("v_and_b32 v%d, 31, v%d" % (vj, vl))
    a("v_lshrrev_b32 v%d, 5, v%d" % (vh, vl))
    a("s_mul_i32 s29, s4, %d" % R1S)
    a("s_mov_b32 m0, s29")
    a("s_mul_i32 s32, s4, %d" % US)
    a("s_add_u32 s32, s32, %d" % UBASE)
    pats = [(6,10),(3,5),(11,13),(4,12),(5,11),(16,16),(14,16),(12,13)]
    Lc = sum((p[0]+15) << (8*i) for i, p in enumerate(pats))
    Wc = sum((p[1]-p[0]+1) << (8*i) for i, p in enumerate(pats))
    a("s_mov_b32 s34, 0x%x" % (Lc & 0xffffffff)); a("s_mov_b32 s35, 0x%x" % (Lc >> 32))
    a("s_mov_b32 s36, 0x%x" % (Wc & 0xffffffff)); a("s_mov_b32 s37, 0x%x" % (Wc >> 32))
    a("s_lshl_b32 s33, s4, 3")
    a("s_lshr_b64 s[34:35], s[34:35], s33")
    a("s_lshr_b64 s[36:37], s[36:37], s33")
    a("s_bfm_b32 s34, s36, s34")
    a("s_mov_b32 s35, 0")
    a("s_cmp_ge_u32 s4, 5")
    a("s_cselect_b32 s36, 0xffff, 0x3f80") if False else (a("s_mov_b32 s36, 0x3f80"), a("s_cselect_b32 s36, 0xffff, s36"))
    a("v_lshlrev_b32 v%d, 3, v%d" % (t0, vg))
    a("v_sub_u32 v%d, v%d, v%d" % (t0, t0, vb))
    a("v_add_u32 v%d, 15, v%d" % (t0, t0))
    a("v_lshrrev_b64 %s, v%d, s[34:35]" % (vr(T, 2), t0))
    a("s_mov_b32 s37, 0x10001")
    for d in range(4):
        a("v_bfe_u32 v%d, v%d, %d, 2" % (t1, T, 2*d))
        a("v_lshl_or_b32 v%d, v%d, 15, v%d" % (t1, t1, t1))
        a("v_and_b32 v%d, s37, v%d" % (t1, t1))
        a("v_mul_u32_u24 v%d, s36, v%d" % (P+d, t1))
    a("v_lshl_add_u32 v%d, v%d, 4, s32" % (t0, vl))
    a.ds("ds_write_b128 v%d, %s offset:512" % (t0, vr(P, 4)))
    for i in range(4): a("v_mov_b32 v%d, 0" % (PK+i))
    a("v_lshl_add_u32 v%d, v%d, 4, s32" % (t1, vj))
    a.ds("ds_write_b128 v%d, %s" % (t1, vr(PK, 4)))
    a("v_lshlrev_b32 v%d, 5, v%d" % (t0, vb))
    a("v_lshl_add_u32 v%d, v%d, 4, v%d" % (t0, vg, t0))
    a("v_add_u32 v%d, s32, v%d" % (vU, t0))
    a("v_lshlrev_b32 v%d, 3, v%d" % (vYr, vl))
    a("v_add_u32 v%d, s29, v%d" % (vY, vYr))
    a("s_lshl_b32 s33, s4, 9")
    a("s_add_u32 s33, s33, %d" % (UBASE+512))
    a("v_add_u32 v%d, s33, v%d" % (vUW, vYr))
    a("v_lshlrev_b32 v%d, 4, v%d" % (t0, vb))
    a("v_lshl_add_u32 v%d, v%d, 2, v%d" % (t0, vg, t0))
    a("s_lshl_b32 s33, s4, 8")
    a("v_add_u32 v%d, s33, v%d" % (t0, t0))
    a("v_mul_u32_u24 v%d, 2304, v%d" % (t0, t0))
    a("s_lshl_b32 s33, s3, 4")
    a("s_add_u32 s33, s33, 3456")
    a("v_add_u32 v%d, s33, v%d" % (vOut, t0))
    a("v_mul_u32_u24 v%d, %d, v%d" % (t0, RS, vj))
    a("v_lshl_add_u32 v%d, v%d, 4, v%d" % (t0, vh, t0))
    a("v_add_u32 v%d, s29, v%d" % (vKF, t0))
    a("v_lshlrev_b32 v%d, 4, v%d" % (t0, vj))
    a("v_lshl_add_u32 v%d, v%d, 3, v%d" % (t0, vh, t0))
    a("s_add_u32 s33, s29, 504")
    a("v_sub_u32 v%d, s33, v%d" % (vTW, t0))
    for s, r in ((1, vTW1), (2, vTW2), (5, vTW5), (6, vTW6)):
        a("v_add_u32 v%d, %d, v%d" % (r, s*CS0, vTW))
    a("v_lshlrev_b32 v%d, 2, v%d" % (t0, vj))
    a("v_lshl_add_u32 v%d, v%d, 7, v%d" % (t0, vh, t0))
    a("s_add_u32 s33, s29, %d" % (T2O + 372))
    a("v_sub_u32 v%d, s33, v%d" % (vT2W, t0))
    a("v_lshlrev_b32 v%d, 1, v%d" % (t0, vj))
    a("v_lshl_add_u32 v%d, v%d, 7, v%d" % (t0, vh, t0))
    a("s_add_u32 s33, s29, %d" % (T3O + 194))
    a("v_sub_u32 v%d, s33, v%d" % (vT3W, t0))
    a("v_and_b32 v%d, 7, v%d" % (t0, vl))
    a("v_min_u32 v%d, 6, v%d" % (t0, t0))
    a("v_lshlrev_b32 v%d, 4, v%d" % (t1, t0))
    a("v_cmp_lt_u32 vcc, 3, v%d" % t0)
    a("v_add_u32 v%d, 1008, v%d" % (t2, t1))
    a("v_lshrrev_b32 v%d, 3, v%d" % (t0, vl))
    a("v_cndmask_b32 v%d, v%d, v%d, vcc" % (t1, t1, t2))
    a("v_mul_u32_u24 v%d, %d, v%d" % (t0, CS0, t0))
    a("v_add3_u32 v%d, v%d, v%d, s29" % (vZ1, t0, t1))
    a("v_lshlrev_b32 v%d, 4, v%d" % (t1, vb))
    a("v_cmp_lt_u32 vcc, 7, v%d" % vb)
    a("v_add_u32 v%d, 240, v%d" % (t2, t1))
    a("v_mul_u32_u24 v%d, %d, v%d" % (t0, CS2, vg))
    a("v_cndmask_b32 v%d, v%d, v%d, vcc" % (t1, t1, t2))
    a("v_add_u32 v%d, v%d, v%d" % (t1, t0, t1))
    a("v_and_b32 v%d, 7, v%d" % (t0, vl))
    a("v_min_u32 v%d, 3, v%d" % (t0, t0))
    a("v_lshlrev_b32 v%d, 4, v%d" % (t0, t0))
    a("v_bfe_u32 v%d, v%d, 3, 2" % (t2, vl))
    a("v_mul_u32_u24 v%d, %d, v%d" % (t2, CS3, t2))
    a("v_add_u32 v%d, %d, v%d" % (t0, T3O - T2O + 256, t0))
    a("v_cmp_lt_u32 vcc, 31, v%d" % vl)
    a("v_add_u32 v%d, v%d, v%d" % (t0, t0, t2))
    a("s_add_u32 s33, s29, %d" % T2O)
    a("v_cndmask_b32 v%d, v%d, v%d, vcc" % (t1, t1, t0))
    a("v_add_u32 v%d, s33, v%d" % (vZ2, t1))
    a("v_sub_u32 v%d, 7, v%d" % (t0, vb))
    a("v_and_b32 v%d, 7, v%d" % (t0, t0))
    a("v_mul_u32_u24 v%d, %d, v%d" % (t0, CS0, t0))
    a("v_lshrrev_b32 v%d, 3, v%d" % (t1, vb))
    a("v_sub_u32 v%d, v%d, v%d" % (t1, vg, t1))
    a("v_lshl_add_u32 v%d, v%d, 4, v%d" % (t0, t1, t0))
    a("s_add_u32 s33, s29, 16")
    a("v_add_u32 v%d, s33, v%d" % (vTA, t0))
    a("v_and_b32 v%d, 1, v%d" % (t0, vb))
    a("v_mul_u32_u24 v%d, %d, v%d" % (t0, CS2, t0))
    a("v_lshrrev_b32 v%d, 1, v%d" % (t1, vb))
    a("v_lshl_add_u32 v%d, v%d, 4, v%d" % (t0, t1, t0))
    a("v_lshlrev_b32 v%d, 5, v%d" % (t1, vg))
    a("v_sub_u32 v%d, v%d, v%d" % (t0, t1, t0))
    a("s_add_u32 s33, s29, %d" % (T2O + CS2 + 112))
    a("v_add_u32 v%d, s33, v%d" % (vT2R, t0))
    a("v_and_b32 v%d, 3, v%d" % (t0, vb))
    a("v_mul_u32_u24 v%d, %d, v%d" % (t0, CS3, t0))
    a("v_lshrrev_b32 v%d, 2, v%d" % (t1, vb))
    a("v_sub_u32 v%d, v%d, v%d" % (t1, vg, t1))
    a("v_lshlrev_b32 v%d, 4, v%d" % (t1, t1))
    a("v_sub_u32 v%d, v%d, v%d" % (t0, t1, t0))
    a("s_add_u32 s33, s29, %d" % (T3O + 3*CS3 + 64))
    a("v_add_u32 v%d, s33, v%d" % (vT3R, t0))
    a("s_mov_b32 s40, 0x05040100")
    a("s_mov_b32 s41, 0x07060302")
    a("v_lshlrev_b32 v%d, 4, v%d" % (t0, vl))
    a("v_add_u32 v%d, %d, v%d" % (t0, UBASE+512, t0))
    a.waitall()
    a("s_barrier")
    for i in range(8):
        dst = BND+4*i if i < 5 else MSK+4*(i-5)
        a.ds("ds_read_b128 %s, v%d offset:%d" % (vr(dst, 4), t0, i*US))
    a.waitall()
    a("s_barrier")
    a("s_waitcnt vmcnt(5)")
    a("v_lshlrev_b32 v%d, 16, v%d" % (vdt, vdt))
    a("v_mul_f32 v%d, 0x3fb8aa3b, v%d" % (vdt, vdt))
    a("v_exp_f32 v%d, v%d" % (vdt, vdt))
    a("v_lshlrev_b32 v%d, 16, v%d" % (vD, vD))
    a("v_cmp_eq_u32 vcc, 0, v%d" % vl)
    a("v_cvt_pk_bf16_f32 v%d, v%d, v%d" % (vdt, vdt, vdt))
    a("v_and_b32 v%d, 0xffff0000, v%d" % (vdt, vdt))
    a("v_cndmask_b32 v%d, 0, v%d, vcc" % (vDm, vD))
    a("v_mul_f32 v%d, 0xbfb8aa3b, v%d" % (cN, vdt))
    a("v_mul_f32 v%d, 0.15915494, v%d" % (cP, vdt))
    a("v_add_f32 v%d, v%d, v%d" % (c2, vdt, vdt))
    a("s_mov_b32 s42, 0")
    a.lab("L_kg")
    zr, zi = T, T+1
    a("v_lshlrev_b32 v%d, 16, v%d" % (zr, pA))
    a("v_mul_f32 v%d, 0x3fb8aa3b, v%d" % (zr, zr))
    a("v_exp_f32 v%d, v%d" % (zr, zr))
    a("v_lshlrev_b32 v%d, 16, v%d" % (zi, pI))
    a("v_lshlrev_b32 v%d, 16, v%d" % (F0, pC))
    a("v_cvt_pk_bf16_f32 v%d, v%d, v%d" % (zr, zr, zr))
    a("v_lshlrev_b32 v%d, 16, v%d" % (F0+1, pC+1))
    a("v_and_b32 v%d, 0xffff0000, v%d" % (zr, zr))
    a("v_mul_f32 v%d, v%d, v%d" % (zi, zi, cP))
    a("v_mul_f32 v%d, v%d, v%d" % (zr, zr, cN))
    a("v_pk_mul_f32 %s, %s, %s op_sel_hi:[1,0]" % (vr(F0, 2), vr(F0, 2), vr(c2, 2)))
    def seed(w, scale, conj):
        e, an = T+2, T+3
        if scale is None:
            a("v_exp_f32 v%d, v%d" % (e, zr))
            a("v_fract_f32 v%d, v%d" % (an, zi))
        else:
            a("v_mul_f32 v%d, %s, v%d" % (e, scale, zr))
            a("v_mul_f32 v%d, %s, v%d" % (an, scale, zi))
            a("v_exp_f32 v%d, v%d" % (e, e))
            a("v_fract_f32 v%d, v%d" % (an, an))
        a("v_cos_f32 v%d, v%d" % (w, an))
        a("v_sin_f32 v%d, v%d" % (w+1, an))
        a("s_nop 0")
        a("v_pk_mul_f32 %s, %s, %s op_sel_hi:[1,0]%s" % (vr(w, 2), vr(w, 2), vr(e, 2), " neg_hi:[1,0]" if conj else ""))
    seed(w8, "0x41000000", True)
    seed(w1, None, False)
    seed(w256, "0x43800000", False)
    for r in (pA, pI, pC, pC+1): a("v_lshrrev_b32 v%d, 16, v%d" % (r, r))
    def cmul(dst, x, w, t):
        a("v_pk_mul_f32 %s, %s, %s op_sel_hi:[0,1]" % (vr(t, 2), vr(x, 2), vr(w, 2)))
        a("v_pk_fma_f32 %s, %s, %s, %s op_sel:[1,1,0] op_sel_hi:[1,0,1] neg_lo:[1,0,0]" % (vr(dst, 2), vr(x, 2), vr(w, 2), vr(t, 2)))
    cmul(w2, w1, w1, tF)
    def kmfma(first):
        for ks in range(8):
            if ks in (0, 2, 4, 6):
                a("s_waitcnt lgkmcnt(%d)" % (12 - 2*ks))
            c = "0" if (first and ks == 0) else vr(KD, 16)
            a("v_mfma_f32_32x32x16_bf16 %s, %s, %s, %s" % (vr(KD, 16), vr(8+8*ks, 4), vr(12+8*ks, 4), c))
    a("s_cmp_eq_u32 s42, 0")
    a("s_cbranch_scc1 L_kg2")
    kmfma(True)
    a.lab("L_kg2")
    pi = [0]
    def put(x, rows):
        p = P + (pi[0] % 8); pi[0] += 1
        a("v_cvt_pk_bf16_f32 v%d, v%d, v%d" % (p, x, x+1))
        for r in rows: a("ds_write_addtid_b32 v%d offset:%d" % (p, r*RS))
    opsE = []
    opsE.append(lambda: (a("v_mov_b32 v%d, 0x3f80" % (P+7)), a("ds_write_addtid_b32 v%d offset:%d" % (P+7, 24*RS))))
    opsE.append(lambda: put(w8, [25]))
    opsE.append(lambda: (cmul(E, w8, w8, tE), put(E, [26])))
    for j in range(3, 32):
        opsE.append(lambda j=j: (cmul(E, E, w8, tE), put(E, [24+j])))
    opsF = []
    opsF.append(lambda: put(F0, [0]))
    rowsF = {1:[1],2:[2],3:[3],4:[8,4],5:[5],6:[6],7:[7],8:[12]}
    opsF.append(lambda: (cmul(F, F0, w1, tF), put(F, rowsF[1])))
    for i in range(2, 9): opsF.append(lambda i=i: (cmul(F, F, w1, tF), put(F, rowsF[i])))
    opsF.append(lambda: (cmul(F, F0, w256, tF), put(F, [9])))
    opsF.append(lambda: (cmul(F, F, w2, tF), put(F, [10])))
    opsF.append(lambda: (cmul(F260, F, w2, tF), put(F260, [11, 13])))
    opsF.append(lambda: (cmul(F, F260, w2, tF), put(F, [14])))
    opsF.append(lambda: (cmul(F264, F, w2, tF), put(F264, [15])))
    opsF.append(lambda: (cmul(F260, F260, w256, tF), put(F260, [16])))
    opsF.append(lambda: (cmul(F264, F264, w256, tF), put(F264, [17])))
    opsF.append(lambda: (cmul(F260, F260, w256, tF), put(F260, [20])))
    opsF.append(lambda: (cmul(F264, F264, w256, tF), put(F264, [21])))
    for r in (18, 19, 22, 23):
        opsF.append(lambda r=r: (cmul(F264, F264, w256, tF), put(F264, [r])))
    ie = jf = 0
    while ie < len(opsE) or jf < len(opsF):
        if ie < len(opsE): opsE[ie](); ie += 1
        if jf < len(opsF) and jf * len(opsE) <= ie * len(opsF): opsF[jf](); jf += 1
    for ks in range(8):
        a("ds_read_b128 %s, v%d offset:%d" % (vr(8+8*ks, 4), vKF, ks*32))
        a("ds_read_b128 %s, v%d offset:%d" % (vr(12+8*ks, 4), vKF, 24*RS + ks*32))
    a("s_add_u32 s42, s42, 1")
    a("s_cmp_lt_u32 s42, 2")
    a("s_cbranch_scc1 L_kg")
    kmfma(False)
    a.nds = a.done = 0
    for i in range(4): a("v_mov_b32 v%d, 0" % (PK+i))
    a.ds("ds_write_b128 v%d, %s" % (vZ1, vr(PK, 4)))
    a.ds("ds_write_b128 v%d, %s" % (vZ2, vr(PK, 4)))
    a("s_waitcnt vmcnt(0)")
    for p in range(4):
        for half, sel in ((0, "s40"), (1, "s41")):
            ch = 2*p + half
            o = XT + 2*ch
            a("v_perm_b32 v%d, v%d, v%d, %s" % (o, RAW+4+p, RAW+p, sel))
            a("v_perm_b32 v%d, v%d, v%d, %s" % (o+1, RAW+12+p, RAW+8+p, sel))
            a.ds("ds_write_b64 v%d, %s offset:%d" % (vUW, vr(o, 2), ch*US))
    d = lambda i: KD+i
    a("v_add_f32 v%d, v%d, v%d" % (d(0), d(0), vDm))
    Pe, Po, Qe, Qo, R2, R3, K0, K10 = PK, PK+2, PK+4, PK+6, PK+8, PK+9, PK+10, PK+11
    cv = lambda dst, lo, hi: a("v_cvt_pk_bf16_f32 v%d, v%d, v%d" % (dst, lo, hi))
    cv(Pe, d(3), d(2)); cv(Pe+1, d(1), d(0)); cv(Po, d(4), d(3)); cv(Po+1, d(2), d(1))
    cv(Qe, d(7), d(6)); cv(Qe+1, d(5), d(5)); cv(Qo, d(7), d(7)); cv(Qo+1, d(6), d(5))
    cv(R2, d(9), d(8)); cv(R3, d(10), d(11)); cv(K0, d(0), d(0)); cv(K10, d(9), d(9))
    w2reg = {1: vTW1, 2: vTW2, 5: vTW5, 6: vTW6}
    for s in range(8):
        cs = 540 if s % 2 == 0 else 539
        for seg in range(2):
            src = ((Pe, Po), (Qe, Qo))[seg][s % 2]
            rel = 2*(cs - s - 256*seg) - 504
            if s in w2reg:
                assert rel % 4 == 0
                a.ds("ds_write2_b32 v%d, v%d, v%d offset0:%d offset1:%d" % (w2reg[s], src, src+1, rel//4, rel//4+1))
            else:
                a.ds("ds_write_b64 v%d, %s offset:%d" % (vTW, vr(src, 2), s*CS0 + rel))
    a.ds("ds_write_b32 v%d, v%d offset:8" % (vT2W, R2))
    a.ds("ds_write_b32 v%d, v%d offset:%d" % (vT2W, R2, CS2))
    for ci, s in enumerate((0, 2, 4, 6)):
        a.ds("ds_write_b16 v%d, v%d offset:%d" % (vT3W, R3, ci*CS3 + 2*(6-s) + 64))
        a.ds("ds_write_b16_d16_hi v%d, v%d offset:%d" % (vT3W, R3, ci*CS3 + 2*(6-s)))
    a("v_readlane_b32 s44, v%d, 0" % K0)
    a("v_readlane_b32 s45, v%d, 63" % Qo)
    a("v_readlane_b32 s46, v%d, 63" % K10)
    for m in range(17):
        a.ds("ds_read_b128 %s, v%d offset:%d" % (vr(A0+4*m, 4), vTA, 64*(16-m)), "A%d" % m)
    for i, (dl, sg) in enumerate([(2,0),(2,1),(3,0),(3,1),(4,0),(4,1)]):
        a.ds("ds_read_b128 %s, v%d offset:%d" % (vr(W2+4*i, 4), vT2R, 128*(4-dl) + 16*sg))
    for i in range(4):
        a.ds("ds_read_b128 %s, v%d offset:%d" % (vr(W3+4*i, 4), vT3R, 64*(3-i)))
    a.waitall()
    a("s_barrier")
    W2r = lambda dl, sg: vr(W2+4*(2*(dl-2)+sg), 4)
    W3r = lambda dl: vr(W3+4*(dl-4), 4)
    Sreg = lambda c: SH + 8*(c % 2)
    Hreg = lambda c: SH + 8*(c % 2) + 4
    NR = 6
    stream = [(c, m) for c in range(8) for m in range(1, 8)]
    slot = {cm: RING + 4*(i % NR) for i, cm in enumerate(stream)}
    nload = [0]
    def loadU(upto):
        while nload[0] < min(upto, len(stream)):
            c, m = stream[nload[0]]
            a.ds("ds_read_b128 %s, v%d offset:%d" % (vr(slot[c, m], 4), vU, 512 + 2*(256*c - 32*m - 16)), ("U", c, m))
            nload[0] += 1
    def loadSH(c):
        a.ds("ds_read_b128 %s, v%d offset:%d" % (vr(Sreg(c), 4), vU, 512 + 2*(256*c - 16)), ("S", c))
        if c <= 5:
            a.ds("ds_read_b128 %s, v%d offset:%d" % (vr(Hreg(c), 4), vU, 512 + 2*(256*c - 24)), ("H", c))
    inited = set()
    def mf(acc, A, B):
        c = vr(ACC+4*acc, 4) if acc in inited else "0"
        inited.add(acc)
        a("v_mfma_f32_16x16x32_bf16 %s, %s, %s, %s" % (vr(ACC+4*acc, 4), A, B, c))
    def mfz(dst, A, B):
        a("v_mfma_f32_16x16x32_bf16 %s, %s, %s, 0" % (vr(dst, 4), vr(A, 4), vr(B, 4)))
    loadSH(0); loadU(NR)
    for dd in range(4):
        a("v_and_or_b32 v%d, s44, v%d, v%d" % (A0+dd, MSK+dd, A0+dd))
        a("v_and_or_b32 v%d, s45, v%d, v%d" % (A0+64+dd, MSK+4+dd, A0+64+dd))
        a("v_and_b32 v%d, s46, v%d" % (A32+dd, MSK+8+dd))
    def duty(c):
        a("s_cmp_lg_u32 s4, %d" % c)
        a("s_cbranch_scc1 L_nd%d" % c)
        a("v_add_u32 v5, %d, v%d" % (4*R1S, vYr))
        for ch in range(8):
            a("ds_read_b64 %s, v%d offset:%d" % (vr(XT+2*ch, 2), vYr if ch < 4 else 5, (ch % 4)*R1S + 512*c))
        a("s_waitcnt lgkmcnt(0)")
        for t in range(4):
            for p in range(4):
                a("v_perm_b32 v%d, v%d, v%d, %s" % (OUTR+4*t+p, XT+4*p+2+(t >> 1), XT+4*p+(t >> 1), "s41" if t & 1 else "s40"))
            a("global_store_dwordx4 v%d, %s, s[24:25] offset:%d" % (vOut, vr(OUTR+4*t, 4), -3456 + 2304*t))
        a.lab("L_nd%d" % c)
    for c in range(8):
        a.c("---- tile %d" % c)
        if c > 0: duty(c-1)
        S, H = Sreg(c), Hreg(c)
        a.wait(("H", c) if c <= 5 else ("S", c))
        if c <= 5:
            mfz(XT, H, Be2); mfz(XT+4, S, Bo2a); mfz(XT+8, S, Be2); mfz(XT+12, S, Bo2b)
        mf(c, vr(A0, 4), vr(S, 4))
        if c <= 6: mf(c+1, vr(A0+32, 4), vr(S, 4))
        if c <= 5: mf(c+2, vr(A0+64, 4), vr(S, 4))
        if c <= 3: mf(c+4, vr(A32, 4), vr(S, 4))
        cvq = []
        if c <= 5:
            for sg in range(2):
                for vv in range(2):
                    v = 2*sg + vv
                    cvq.append((X2+4*sg+2*vv, XT+v, XT+4+v))
                    cvq.append((X2+4*sg+2*vv+1, XT+8+v, XT+12+v))
        for m in range(1, 8):
            a.wait(("U", c, m))
            f = vr(slot[c, m], 4)
            mf(c, vr(A0+4*m, 4), f)
            if m >= 3 and cvq and m <= 4:
                for _ in range(2): cv(*cvq.pop(0))
            if c <= 6: mf(c+1, vr(A0+4*(m+8), 4), f)
            if m >= 3 and cvq and m <= 4:
                for _ in range(2): cv(*cvq.pop(0))
            loadU(stream.index((c, m)) + 1 + NR)
            if m == 5 and c <= 3:
                mfz(XT, H, Be3); mfz(XT+4, S, Bo3)
            if m == 5 and c < 7: loadSH(c+1)
        assert not cvq
        nm = 0
        if c <= 5:
            for sg in range(2):
                for dl in (2, 3, 4):
                    if c+dl <= 7: mf(c+dl, vr(X2+4*sg, 4), W2r(dl, sg)); nm += 1
        if c <= 3:
            for v in range(4): cv(X3+v, XT+v, XT+4+v)
            nm += 4
        if nm < 8: a("s_nop %d" % (8 - nm - 1))
        cv(vYp, ACC+4*c, ACC+4*c+1); cv(vYp+1, ACC+4*c+2, ACC+4*c+3)
        a.ds("ds_write_b64 v%d, %s offset:%d" % (vY, vr(vYp, 2), 512*c), ("Y", c))
        if c <= 3:
            for dl in (4, 5, 6, 7):
                if c+dl <= 7: mf(c+dl, vr(X3, 4), W3r(dl))
        a.wait(("Y", c))
        a("s_barrier")
    duty(7)
    a.lab("L_end")
    a("s_endpgm")
    body = "\n".join(a.L)
    return HDR + """; @launch grid=(144,1,1) block=(512,1,1) lds=%d
.amdgcn_target "amdgcn-amd-amdhsa--gfx950"
.text
.globl %s_kernel
.p2align 8
.type %s_kernel,@function
%s_kernel:
%s
.section .rodata,"a"
.p2align 6
.amdhsa_kernel %s_kernel
  .amdhsa_next_free_vgpr 256
  .amdhsa_next_free_sgpr 64
  .amdhsa_accum_offset 256
  .amdhsa_group_segment_fixed_size 0
  .amdhsa_kernarg_size 136
  .amdhsa_user_sgpr_count 2
  .amdhsa_user_sgpr_kernarg_segment_ptr 1
  .amdhsa_system_sgpr_workgroup_id_x 1
.end_amdhsa_kernel
""" % (LDS, NAME, NAME, NAME, body, NAME)

if __name__ == "__main__":
    out = sys.argv[1] if len(sys.argv) > 1 else "cdna_kernels/%s.s" % NAME
    open(out, "w").write(gen())
    assert all(((t*21846) >> 16) == t//3 for t in range(512))
```
